```python
import torch

def _softmax(x, axis=-1):
    return torch.softmax(x, dim=axis)
def _gelu(x):
    return torch.nn.functional.gelu(x, approximate="tanh")
def _silu(x):
    return torch.nn.functional.silu(x)
def _sigmoid(x):
    return torch.sigmoid(x)
def _layernorm(x, axis=-1, eps=1e-5):
    m = x.mean(dim=axis, keepdim=True)
    v = x.var(dim=axis, keepdim=True, unbiased=False)
    return (x - m) / torch.sqrt(v + eps)
def _scatter_add(tgt, idx, src, axis=0):
    return tgt.clone().index_add_(axis, idx, src)
def _segment_sum(src, seg, n):
    out = torch.zeros((n,) + src.shape[1:], dtype=src.dtype)
    return out.index_add_(0, seg, src)
def _pad(x, pw):
    flat = tuple(v for pair in reversed(pw) for v in pair)
    return torch.nn.functional.pad(x, flat)

kernel_name = 'gated_mix__linear_attn_block__geglu_ffn__prompt'

def setup_inputs():

    _w = (lambda a: (lambda t: t.to(torch.bfloat16) if t.is_floating_point() else t)(torch.as_tensor(a)))
    def _A_setup():
        B, S, D = 1, 2048, 576
        return {
            "x": _w((lambda *s: torch.randn(*s, dtype=torch.bfloat16) * 0.05)(B, S, D)),
            "wqkv": _w((lambda *s: torch.randn(*s, dtype=torch.bfloat16) * 0.8)(D, 3 * D)),
            "wo": _w((lambda *s: torch.randn(*s, dtype=torch.bfloat16) * 0.05)(D, D)),
        }
    _A_in = _A_setup()

    def _B_setup():
        B, S, D, F = 1, 2048, 576, 4608
        return {
            "x": _w((lambda *s: torch.randn(*s, dtype=torch.bfloat16) * 0.05)(B, S, D)),
            "w_gate": _w((lambda *s: torch.randn(*s, dtype=torch.bfloat16) * 0.05)(D, F)),
            "w_up": _w((lambda *s: torch.randn(*s, dtype=torch.bfloat16) * 0.05)(D, F)),
            "w_down": _w((lambda *s: torch.randn(*s, dtype=torch.bfloat16) * 0.05)(F, D)),
        }
    _B_in = _B_setup()

    return {
        "A_x": _A_in["x"],
        "A_wqkv": _A_in["wqkv"],
        "A_wo": _A_in["wo"],
        "B_x": _B_in["x"],
        "B_w_gate": _B_in["w_gate"],
        "B_w_up": _B_in["w_up"],
        "B_w_down": _B_in["w_down"],
        "gate_w": _w((lambda *s: torch.randn(*s, dtype=torch.bfloat16) * 0.05)(576) * 16.0),
    }

def reference(A_x, A_wqkv, A_wo, B_x, B_w_gate, B_w_up, B_w_down, gate_w):
    def _A_ref(x, wqkv, wo):
        B, S, D = x.shape
        H = 32; Dh = D // H
        qkv = (lambda x, *d: x.permute(*d))((x @ wqkv).reshape(B, S, 3, H, Dh), 2, 0, 3, 1, 4)
        q, k, v = qkv[0], qkv[1], qkv[2]
        phi = lambda t: torch.where(t > 0, t + 1, torch.exp(t)) + 1e-6
        pq, pk = phi(q), phi(k)
        kv = torch.einsum("bhsd,bhse->bhde", pk, v)
        z = torch.einsum("bhsd->bhd", pk)
        num = torch.einsum("bhqd,bhde->bhqe", pq, kv)
        den = torch.einsum("bhqd,bhd->bhq", pq, z)[..., None] + 1e-6
        o = num / den
        return (lambda x, *d: x.permute(*d))(o, 0, 2, 1, 3).reshape(B, S, D) @ wo

    def _B_ref(x, w_gate, w_up, w_down):
        return (_gelu(x @ w_gate) * (x @ w_up)) @ w_down

    x = A_x
    g = _sigmoid((x * gate_w).sum(-1, keepdims=True))
    a = _A_ref(x, A_wqkv, A_wo)
    b = _B_ref(x, B_w_gate, B_w_up, B_w_down)
    return g * a + (1 - g) * b
```

```python
import re

TRANS = {"v_exp_f32", "v_log_f32", "v_rcp_f32", "v_rsq_f32", "v_sqrt_f32", "v_sin_f32", "v_cos_f32",
         "v_rcp_iflag_f32"}

def parse_regs(op):
    op = op.strip()
    neg = op.startswith("-")
    if neg: op = op[1:]
    if op.startswith("abs(") and op.endswith(")"): op = op[4:-1]
    if op.startswith("|") and op.endswith("|"): op = op[1:-1]
    m = re.fullmatch(r"([vas])(\d+)", op)
    if m: return {(m.group(1), int(m.group(2)))}
    m = re.fullmatch(r"([vas])\[(\d+):(\d+)\]", op)
    if m: return {(m.group(1), i) for i in range(int(m.group(2)), int(m.group(3)) + 1)}
    if op in ("vcc", "exec", "m0", "scc"): return {(op, 0)}
    if op in ("vcc_lo", "vcc_hi"): return {("vcc", 0)}
    if op in ("exec_lo", "exec_hi"): return {("exec", 0)}
    return set()

class Ins:
    __slots__ = ("op", "ops", "mods", "kind", "wr", "rd", "label", "target", "comment", "nopn", "srcc", "srcab", "stdata", "passes", "dpp")
    def __init__(self, op, ops=(), mods="", comment=""):
        self.op = op; self.ops = list(ops); self.mods = mods; self.comment = comment
        self.label = None; self.target = None; self.nopn = 0
        self.wr = set(); self.rd = set(); self.srcc = set(); self.srcab = set(); self.stdata = set()
        self.passes = 0; self.dpp = False
        self.classify()
    def classify(self):
        op = self.op; ops = self.ops
        R = [parse_regs(o) for o in ops]
        if op.endswith(":"):
            self.kind = "label"; self.label = op[:-1]; return
        if op == "s_nop":
            self.kind = "nop"; self.nopn = int(ops[0]) + 1; return
        if op in ("s_waitcnt", "s_barrier", "s_endpgm", "s_setprio", "s_sleep"):
            self.kind = "ctl"; return
        if op == "s_branch" or op.startswith("s_cbranch"):
            self.kind = "branch"; self.target = ops[0]
            if "vcc" in op: self.rd.add(("vcc", 0))
            if "exec" in op: self.rd.add(("exec", 0))
            return
        if op.startswith("s_load") or op.startswith("s_buffer_load") or op.startswith("s_memtime") or op.startswith("s_memrealtime"):
            self.kind = "smem"; self.wr |= R[0]
            for r in R[1:]: self.rd |= r
            return
        if op.startswith("s_"):
            self.kind = "salu"
            if op.startswith("s_cmp") or op.startswith("s_bitcmp"):
                for r in R: self.rd |= r
            else:
                self.wr |= R[0]
                for r in R[1:]: self.rd |= r
                if "saveexec" in op: self.wr.add(("exec", 0)); self.rd.add(("exec", 0))
                if op.startswith("s_cmov") or op.startswith("s_addk") or op.startswith("s_mulk"): self.rd |= R[0]
            return
        if op.startswith("v_mfma"):
            self.kind = "mfma"; self.wr |= R[0]
            self.srcab = R[1] | R[2]; self.srcc = R[3]
            self.rd |= R[1] | R[2] | R[3]
            self.passes = 8 if "32x32" in op else 4
            return
        if op.startswith("buffer_") or op.startswith("global_"):
            self.kind = "vmem"
            lds = " lds" in (" " + self.mods + " ") or "_lds_" in op
            if lds:
                for r in R: self.rd |= r
                self.rd.add(("m0", 0)); self.kind = "vmem_lds"
            elif "store" in op:
                for r in R: self.rd |= r
                d = R[0] if op.startswith("buffer_") else R[1]
                if "x3" in op or "x4" in op: self.stdata = d
            elif "atomic" in op:
                for r in R: self.rd |= r
                if "sc0" in self.mods: self.wr |= R[0]
            elif op in ("buffer_wbl2", "buffer_inv"):
                pass
            else:
                self.wr |= R[0]
                for r in R[1:]: self.rd |= r
            return
        if op.startswith("ds_"):
            self.kind = "ds"
            if op.startswith("ds_write"):
                for r in R: self.rd |= r
            else:
                self.wr |= R[0]
                for r in R[1:]: self.rd |= r
            return
        if op.startswith("v_"):
            self.kind = "trans" if op in TRANS else "valu"
            if "dpp" in op or "quad_perm" in self.mods or "row_" in self.mods: self.dpp = True
            if op.startswith("v_cmpx"):
                self.wr |= R[0]; self.wr.add(("exec", 0))
                for r in R[1:]: self.rd |= r
            elif op.startswith("v_permlane") and "swap" in op:
                self.wr |= R[0] | R[1]; self.rd |= R[0] | R[1]
            elif op in ("v_add_co_u32", "v_sub_co_u32", "v_addc_co_u32", "v_subb_co_u32", "v_mad_u64_u32"):
                self.wr |= R[0] | R[1]
                for r in R[2:]: self.rd |= r
            else:
                self.wr |= R[0]
                for r in R[1:]: self.rd |= r
                if op.startswith("v_fmac") or op.startswith("v_dot2c") or op.startswith("v_pk_fmac") or self.dpp or op.startswith("v_writelane"):
                    self.rd |= R[0]
            return
        raise ValueError("unknown op " + op)
    def text(self):
        if self.kind == "label": return self.op
        t = "    " + self.op
        if self.ops: t += " " + ", ".join(self.ops)
        if self.mods: t += " " + self.mods
        if self.comment: t += "   ; " + self.comment
        return t

def isv(r): return r[0] in ("v", "a")
def iss(r): return r[0] in ("s", "vcc")

def need(p, c):
    n = 0
    pv = p.kind in ("valu", "trans")
    cv = c.kind in ("valu", "trans")
    if pv:
        wv = {r for r in p.wr if isv(r)}
        ws = {r for r in p.wr if iss(r)}
        if c.kind == "mfma" and wv & c.rd: n = max(n, 2)
        if p.kind == "trans" and c.kind in ("valu", "mfma") and wv & c.rd: n = max(n, 1 if c.kind == "valu" else 2)
        if cv and ws & c.rd:
            n = max(n, 4 if c.op.startswith("v_readlane") or c.op.startswith("v_writelane") else 2)
        if c.kind in ("vmem", "vmem_lds") and ws & c.rd: n = max(n, 5)
        if c.kind in ("salu", "branch") and ws & c.rd: n = max(n, 2)
        if (c.op.startswith("v_readfirstlane") or c.op.startswith("v_readlane")) and wv & c.rd: n = max(n, 1)
        if c.dpp and wv & c.rd: n = max(n, 2)
        if c.op.startswith("v_permlane") and wv & c.rd: n = max(n, 2)
        if ("exec", 0) in p.wr:
            if c.kind == "mfma": n = max(n, 4)
            if c.dpp: n = max(n, 5)
            if c.op.startswith("v_read") or c.op.startswith("v_writelane") or c.op.startswith("v_permlane"): n = max(n, 4)
            if cv and ("exec", 0) in c.rd: n = max(n, 2)
    if p.op.startswith("v_dot"):
        if p.wr & (c.rd | c.wr):
            if c.op != p.op: n = max(n, 3)
            else:
                ab = set()
                for o in c.ops[1:3]: ab |= parse_regs(o)
                if p.wr & ab: n = max(n, 3)
    if p.kind == "mfma":
        big = {4: 8, 8: 12}[p.passes]
        ov = {4: 6, 8: 10}[p.passes]
        war = {4: 3, 8: 7}[p.passes]
        if c.kind == "mfma":
            if p.wr & c.srcab: n = max(n, big)
            if p.wr & c.srcc:
                if p.wr == c.srcc and p.passes == c.passes: pass
                else: n = max(n, ov)
            elif p.wr & c.wr:
                n = max(n, ov)
        elif c.kind in ("valu", "trans", "vmem", "vmem_lds", "ds"):
            if p.wr & (c.rd | c.wr): n = max(n, big)
        if cv and p.srcc & c.wr: n = max(n, war)
    if p.kind == "salu" and ("m0", 0) in p.wr and c.kind == "vmem_lds": n = max(n, 1)
    if p.kind == "salu" and ("exec", 0) in p.wr and False: pass
    if p.stdata and c.kind in ("valu", "trans", "mfma") and p.stdata & c.wr: n = max(n, 2)
    if p.stdata and c.kind in ("vmem", "ds") and p.stdata & c.wr: n = max(n, 1)
    return n

class Asm:
    def __init__(self):
        self.ins = []
    def add(self, op, ops, mods="", c=""):
        def islit(o):
            try: v = int(o, 0)
            except ValueError: return False
            return not (-16 <= v <= 64)
        if op == "s_cselect_b32" and islit(ops[1]) and islit(ops[2]) and ops[1] != ops[2]:
            self.ins.append(Ins("s_mov_b32", [ops[0], ops[2]]))
            ops = [ops[0], ops[1], ops[0]]
        self.ins.append(Ins(op, ops, mods, c))
    def __call__(self, op, *ops, mods="", c=""):
        self.add(op, [str(o) for o in ops], mods, c)
    def label(self, name): self.ins.append(Ins(name + ":"))
    def raw(self, line):
        line = line.split(";")[0].strip()
        if not line: return
        if line.endswith(":"): return self.label(line[:-1])
        parts = line.split(None, 1)
        op = parts[0]
        ops = []; mods = ""
        if len(parts) > 1:
            toks = [t.strip() for t in parts[1].split(",")]
            last = toks[-1].split(None, 1)
            toks[-1] = last[0]
            if len(last) > 1: mods = last[1]
            ops = toks
            if op in ("s_waitcnt",):
                ops = []; mods = parts[1]
        self.add(op, ops, mods)
    def text(self, lines):
        for l in lines.strip().split("\n"): self.raw(l)
    def pad(self):
        MAXW = 13
        changed = True
        start = 0
        while changed:
            changed = False
            ins = self.ins
            labels = {x.label: i for i, x in enumerate(ins) if x.kind == "label"}
            srcs = {}
            for i, x in enumerate(ins):
                if x.kind == "branch" and x.target in labels:
                    srcs.setdefault(labels[x.target], []).append(i)
            for i in range(start, len(ins)):
                c = ins[i]
                if c.kind in ("label", "nop", "ctl"): continue
                worst = 0
                stack = [(i - 1, 0)]
                seen = set()
                while stack:
                    j, dist = stack.pop()
                    if j < 0 or dist >= MAXW or (j, dist) in seen: continue
                    seen.add((j, dist))
                    p = ins[j]
                    if p.kind == "label":
                        for sidx in srcs.get(j, []): stack.append((sidx, dist))
                        if j > 0 and ins[j - 1].op not in ("s_branch", "s_endpgm"): stack.append((j - 1, dist))
                        continue
                    n = need(p, c)
                    if n > dist: worst = max(worst, n - dist)
                    w = p.nopn if p.kind == "nop" else 1
                    stack.append((j - 1, dist + w))
                if worst > 0:
                    ins.insert(i, Ins("s_nop", [str(worst - 1)], comment="auto"))
                    changed = True
                    start = i
                    break
    def render(self):
        self.pad()
        return "\n".join(x.text() for x in self.ins)

def kdesc(name, vgpr, sgpr=102, accum=None):
    if accum is None: accum = (vgpr + 3) // 4 * 4
    return f""".p2align 6
.amdhsa_kernel {name}
  .amdhsa_next_free_vgpr {vgpr}
  .amdhsa_next_free_sgpr {sgpr}
  .amdhsa_accum_offset {accum}
  .amdhsa_group_segment_fixed_size 0
  .amdhsa_kernarg_size 88
  .amdhsa_user_sgpr_count 2
  .amdhsa_user_sgpr_kernarg_segment_ptr 1
  .amdhsa_system_sgpr_workgroup_id_x 1
.end_amdhsa_kernel"""

def vr(a, n=1): return f"v{a}" if n == 1 else f"v[{a}:{a+n-1}]"
def sr(a, n=1): return f"s{a}" if n == 1 else f"s[{a}:{a+n-1}]"
```

```python
import sys, struct
from asmlib import *

HF_OFF = 0
PQ_OFF = 18874368
PQR_OFF = PQ_OFF + 2097152
KVP_OFF = PQR_OFF + 262144
KVX_OFF = KVP_OFF + 1048576
G_OFF = KVX_OFF + 65536
P_OFF = 33554432
WS_SIZE = 268435456

def f32bits(x): return "0x%08x" % struct.unpack("<I", struct.pack("<f", x))[0]
LOG2E = 1.4426950408889634

class LQ:
    def __init__(self, a): self.a = a; self.q = []
    def issue(self, tag): self.q.append(tag)
    def wait(self, *tags):
        idx = -1
        for i, t in enumerate(self.q):
            if t in tags: idx = i
        if idx < 0: return
        n = len(self.q) - 1 - idx
        assert n <= 15
        self.a("s_waitcnt", mods=f"lgkmcnt({n})")
        self.q = self.q[idx + 1:]

def srd(a, d, lo, hi, size):
    a("s_mov_b32", sr(d), lo)
    a("s_mov_b32", sr(d + 1), hi)
    a("s_mov_b32", sr(d + 2), size)
    a("s_mov_b32", sr(d + 3), "0x20000")

def emit_round_pair(a, d, x0, x1, t):
    a("v_cvt_pk_bf16_f32", vr(t), vr(x0), vr(x1))
    a("v_lshlrev_b32", vr(x0), 16, vr(t))
    a("v_and_b32", vr(x1), "0xffff0000", vr(t))

def emit_phi_pair(a, dst, x0, x1, t0, t1, t2, s_log2e, s_eps):
    emit_round_pair(a, None, x0, x1, t0)
    a("v_mul_f32", vr(t0), sr(s_log2e), vr(x0))
    a("v_mul_f32", vr(t1), sr(s_log2e), vr(x1))
    a("v_exp_f32", vr(t0), vr(t0))
    a("v_exp_f32", vr(t1), vr(t1))
    a("v_cmp_lt_f32", "vcc", 0, vr(x0))
    a("v_cmp_lt_f32", "s[98:99]", 0, vr(x1))
    a("v_add_f32", vr(x0), "1.0", vr(x0))
    a("v_add_f32", vr(x1), "1.0", vr(x1))
    a("v_cndmask_b32", vr(x0), vr(t0), vr(x0), "vcc")
    a("v_cndmask_b32", vr(x1), vr(t1), vr(x1), "s[98:99]")
    emit_round_pair(a, None, x0, x1, t0)
    a("v_add_f32", vr(x0), sr(s_eps), vr(x0))
    a("v_add_f32", vr(x1), sr(s_eps), vr(x1))
    a("v_cvt_pk_bf16_f32", vr(dst), vr(x0), vr(x1))

K1_STAGE = 39936
def gen_k1():
    a = Asm()
    N = "k1_kernel"
    ACC = 80
    def acc(t, b): return ACC + (t * 4 + b) * 4
    XF = lambda buf, b: 16 + buf * 16 + b * 4
    WF = lambda s: 48 + s * 4
    a.text(f"""
    s_cmp_ge_u32 s2, 256
    s_cbranch_scc1 L_k1_end
    s_load_dwordx4 s[4:7], s[0:1], 0
    s_load_dwordx4 s[8:11], s[0:1], 32
    s_load_dwordx2 s[12:13], s[0:1], 56
    s_load_dwordx4 s[16:19], s[0:1], 72
    v_and_b32 v1, 63, v0
    v_lshrrev_b32 v11, 6, v0
    v_readfirstlane_b32 s22, v11
    s_and_b32 s25, s2, 7
    s_lshr_b32 s26, s2, 3
    s_and_b32 s27, s26, 3
    s_lshl_b32 s21, s25, 2
    s_add_u32 s21, s21, s27
    s_lshr_b32 s20, s26, 2
    s_and_b32 s23, s22, 3
    s_lshr_b32 s24, s22, 2
    s_waitcnt lgkmcnt(0)
    """)
    srd(a, 28, "s4", "s5", 2359296)
    srd(a, 44, "s18", "s19", WS_SIZE)
    srd(a, 48, "s12", "s13", 1152)
    a.text(f"""
    s_lshl_b32 s70, s20, 8
    s_lshl_b32 s71, s21, 3
    s_add_u32 s70, s70, s71
    s_add_u32 s70, s70, s22
    s_mul_i32 s71, s70, 1152
    v_lshlrev_b32 v11, 5, v1
    buffer_load_dwordx4 v[64:67], v11, s[28:31], s71 offen
    buffer_load_dwordx4 v[68:71], v11, s[28:31], s71 offen offset:16
    buffer_load_dwordx4 v[72:75], v11, s[48:51], 0 offen
    buffer_load_dwordx4 v[76:79], v11, s[48:51], 0 offen offset:16
    """)
    a.text(f"""
    v_lshrrev_b32 v11, 2, v1
    v_lshrrev_b32 v12, 2, v11
    v_sub_u32 v12, 4, v12
    v_and_b32 v12, 3, v12
    v_and_b32 v13, 3, v1
    v_xor_b32 v13, v13, v12
    v_lshlrev_b32 v13, 4, v13
    s_lshl_b32 s72, s20, 8
    s_lshl_b32 s73, s22, 5
    s_add_u32 s72, s72, s73
    v_add_u32 v11, s72, v11
    v_mul_u32_u24 v11, 1152, v11
    v_add_u32 v2, v11, v13
    v_add_u32 v3, 18432, v2
    s_lshl_b32 s59, s22, 11
    s_add_u32 s60, s59, 1024
    s_mov_b32 s52, 0
    """)
    for k in range(3):
        d = 32 + 4 * k
        a.text(f"""
        s_mul_i32 s72, s22, 3
        s_add_u32 s72, s72, {k}
        s_sub_u32 s73, s72, 9
        s_cmp_ge_u32 s72, 9
        s_cselect_b32 s{d}, s10, s8
        s_cselect_b32 s{d+1}, s11, s9
        s_cselect_b32 s74, s73, s72
        s_cselect_b32 s75, 25600, 16384
        s_sub_u32 s73, s72, 18
        s_min_u32 s73, s73, 4
        s_mul_i32 s76, s21, 288
        s_mul_i32 s77, s21, 36
        s_cmp_ge_u32 s72, 18
        s_cselect_b32 s{d}, s6, s{d}
        s_cselect_b32 s{d+1}, s7, s{d+1}
        s_cselect_b32 s74, s73, s74
        s_cselect_b32 s75, 34816, s75
        s_cselect_b32 s{d+2}, 1990656, 5308416
        s_cselect_b32 s{56+k}, 110592, 294912
        s_cselect_b32 s78, 6554, 3641
        s_cselect_b32 s79, 10, 18
        s_cselect_b32 s80, 3456, 9216
        s_cselect_b32 s81, 1104, 0
        s_cselect_b32 s82, 8, 17
        s_cselect_b32 s76, s77, s76
        s_mov_b32 s{d+3}, 0x20000
        s_lshl_b32 s73, s74, 10
        s_add_u32 s{61+k}, s75, s73
        s_lshl_b32 s73, s74, 6
        s_mov_b32 s{53+k}, 0
        v_add_u32 v11, s73, v1
        v_mul_u32_u24 v12, s78, v11
        v_lshrrev_b32 v12, 16, v12
        v_mul_u32_u24 v13, s79, v12
        v_sub_u32 v13, v11, v13
        v_min_u32 v13, s82, v13
        v_mul_u32_u24 v14, 11, v13
        v_lshrrev_b32 v14, 5, v14
        v_mul_u32_u24 v14, s81, v14
        v_lshl_add_u32 v14, v13, 4, v14
        v_and_b32 v15, 0x13, v12
        v_and_b32 v13, 4, v12
        v_lshl_or_b32 v15, v13, 1, v15
        v_and_b32 v13, 8, v12
        v_lshrrev_b32 v13, 1, v13
        v_or_b32 v15, v15, v13
        v_mul_u32_u24 v15, s80, v15
        v_add3_u32 v{4+k}, v15, v14, s76
        """)
    def dma_issue(k, a=a):
        a("s_add_u32", "m0", "s64", sr(59 + k))
        if k < 2:
            a("buffer_load_dwordx4", vr(2 + k), "s[28:31]", "s52", mods="offen lds")
            if k == 1: a("s_add_u32", "s52", "s52", 64)
        else:
            d = 32 + 4 * (k - 2)
            a("buffer_load_dwordx4", vr(2 + k), sr(d, 4), sr(53 + k - 2), mods="offen lds")
            a("s_add_u32", sr(53 + k - 2), sr(53 + k - 2), sr(56 + k - 2))
    def dma_advance():
        a("s_add_u32", "s64", "s64", K1_STAGE)
        a("s_cmp_eq_u32", "s64", 4 * K1_STAGE)
        a("s_cselect_b32", "s64", 0, "s64")
    a("s_mov_b32", "s64", 0)
    for st in range(3):
        for k in range(5): dma_issue(k)
        dma_advance()
    a.text(f"""
    v_and_b32 v11, 15, v1
    v_lshrrev_b32 v12, 4, v1
    v_lshrrev_b32 v13, 2, v11
    v_sub_u32 v13, 4, v13
    v_and_b32 v13, 3, v13
    v_xor_b32 v13, v13, v12
    v_lshlrev_b32 v13, 4, v13
    v_lshl_add_u32 v7, v11, 6, v13
    s_lshl_b32 s72, s23, 12
    v_add_u32 v7, s72, v7
    v_lshrrev_b32 v13, 1, v12
    v_lshlrev_b32 v13, 4, v13
    v_and_b32 v14, 1, v12
    v_lshl_add_u32 v13, v14, 2, v13
    v_bfe_u32 v14, v1, 2, 2
    v_add_u32 v13, v13, v14
    v_and_b32 v14, 3, v1
    v_mul_u32_u24 v15, 288, v13
    v_lshl_add_u32 v15, v14, 3, v15
    v_mul_u32_u24 v11, 160, v13
    s_and_b32 s72, s21, 1
    """)
    a.text(f"""
    s_cmp_eq_u32 s72, 0
    s_cselect_b32 s73, 4, 1
    s_cselect_b32 s74, 0, 5
    s_cselect_b32 s75, 8, 0
    s_cmp_eq_u32 s24, 0
    s_cselect_b32 s68, s73, s74
    s_mov_b32 s69, s75
    s_lshl_b32 s73, s68, 5
    s_add_u32 s73, s73, 16384
    v_add_u32 v8, s73, v15
    s_lshl_b32 s73, s69, 5
    s_add_u32 s73, s73, 16384
    v_add_u32 v9, s73, v15
    v_lshl_add_u32 v10, v14, 3, v11
    v_add_u32 v10, 34816, v10
    v_lshlrev_b32 v12, 3, v14
    s_mov_b32 s73, 0x90208050
    v_lshrrev_b32 v12, v12, s73
    v_and_b32 v12, 0xff, v12
    v_add3_u32 v12, v12, v11, 0
    v_add_u32 v12, 34816, v12
    s_cmp_eq_u32 s24, 0
    s_cselect_b64 s[72:73], -1, 0
    v_cndmask_b32 v9, v10, v9, s[72:73]
    v_cndmask_b32 v10, v12, v10, s[72:73]
    """)
    for r in range(ACC, 256): a("v_mov_b32", vr(r), 0)
    a.text(f"""
    s_waitcnt vmcnt(15)
    v_mov_b32 v11, 0
    """)
    for r in range(8): a("v_dot2_f32_bf16", "v11", vr(64 + r), vr(72 + r), "v11")
    for sh in (1, 2, 4, 8):
        a("v_add_f32_dpp", "v11", "v11", "v11", mods=f"row_shr:{sh} row_mask:0xf bank_mask:0xf bound_ctrl:0")
    a.text(f"""
    v_readlane_b32 s72, v11, 15
    v_readlane_b32 s73, v11, 31
    v_readlane_b32 s74, v11, 47
    v_mov_b32 v11, s72
    v_add_f32 v11, s73, v11
    v_add_f32 v11, s74, v11
    v_cvt_pk_bf16_f32 v11, v11, v11
    v_lshlrev_b32 v11, 16, v11
    v_mul_f32 v11, {f32bits(-LOG2E)}, v11
    v_exp_f32 v11, v11
    v_add_f32 v11, 1.0, v11
    v_rcp_f32 v11, v11
    v_cvt_pk_bf16_f32 v11, v11, v11
    v_lshlrev_b32 v11, 16, v11
    v_sub_f32 v12, 1.0, v11
    v_cvt_pk_bf16_f32 v12, v12, v12
    v_lshlrev_b32 v12, 16, v12
    s_lshl_b32 s72, s70, 2
    s_add_u32 s72, s72, {G_OFF}
    v_mov_b32 v13, 0
    s_mov_b64 exec, 1
    buffer_store_dword v11, v13, s[44:47], s72 offen
    s_add_u32 s72, s72, 8192
    buffer_store_dword v12, v13, s[44:47], s72 offen
    s_mov_b64 exec, -1
    s_mov_b32 s67, 0
    s_mov_b32 s84, {f32bits(LOG2E)}
    s_mov_b32 s85, {f32bits(1e-6)}
    """)
    a("s_waitcnt", mods="vmcnt(12)")
    a("s_barrier")
    a("s_cmp_eq_u32", "s24", 0)
    a("s_cbranch_scc0", "L_k1_ch1")

    def tiles_for(ch):
        T = [(8, k * 32, 2304, False) for k in range(4)] + [(8, 9216 + k * 32, 2304, False) for k in range(4)]
        if ch == 0: T += [(9, 0, 2304, False), (9, 9216, 2304, False), (10, 0, 1280, False)]
        else: T += [(9, 48, 1280, True), (9, 96, 1280, True), (10, 0, 1280, True)]
        return T

    def read_tile(lq, T, t, slot):
        ar, i0, dj, _ = T[t]
        a("ds_read_b64_tr_b16", vr(WF(slot), 2), vr(ar), mods=f"offset:{i0}")
        lq.issue(("w", slot))
        a("ds_read_b64_tr_b16", vr(WF(slot) + 2, 2), vr(ar), mods=f"offset:{i0+dj}")
        lq.issue(("w", slot))
    def read_x(lq, buf, b):
        a("ds_read_b128", vr(XF(buf, b), 4), "v7", mods=f"offset:{b*1024}")
        lq.issue(("x", buf, b))

    def prefetch_head(lq, T, buf):
        read_x(lq, buf, 0); read_x(lq, buf, 1)
        read_tile(lq, T, 0, 0)
        read_x(lq, buf, 2); read_x(lq, buf, 3)
        read_tile(lq, T, 1, 1)
        read_tile(lq, T, 2, 2)

    def stage(lq, ch, T, cur, dma, vmw, first_extra=0):
        nxt = 1 - cur
        if vmw is not None:
            a("s_waitcnt", mods=f"vmcnt({vmw})")
            a("s_barrier")
        dma0 = 0 if ch == 0 else 5
        for t in range(11):
            v = t + 3
            if v <= 10: read_tile(lq, T, v, v % 4)
            elif v == 11:
                a("s_add_u32", "s67", "s67", 1)
                a("s_and_b32", "s67", "s67", 3)
                a("s_cmp_eq_u32", "s67", 0)
                a("s_cselect_b32", "s66", -3 * K1_STAGE, K1_STAGE)
                for r in (7, 8, 9, 10): a("v_add_u32", vr(r), "s66", vr(r))
                read_x(lq, nxt, 0); read_x(lq, nxt, 1)
            elif v == 12:
                read_tile(lq, T, 0, 0)
                read_x(lq, nxt, 2); read_x(lq, nxt, 3)
            elif v == 13: read_tile(lq, T, 1, 1)
            if t == 0: lq.wait(("w", 0), ("x", cur, 0), ("x", cur, 1), ("x", cur, 2), ("x", cur, 3))
            else: lq.wait(("w", t % 4))
            sw = T[t][3]
            for b in range(4):
                A_, B_ = (vr(XF(cur, b), 4), vr(WF(t % 4), 4)) if sw else (vr(WF(t % 4), 4), vr(XF(cur, b), 4))
                a("v_mfma_f32_16x16x32_bf16", vr(acc(t, b), 4), A_, B_, vr(acc(t, b), 4))
                if dma and b == 1 and dma0 <= t < dma0 + 5:
                    dma_issue(t - dma0)
                    if t - dma0 == 4: dma_advance()
        read_tile(lq, T, 2, 2)

    for ch in (0, 1):
        if ch == 1: a.label("L_k1_ch1")
        T = tiles_for(ch)
        lq = LQ(a)
        prefetch_head(lq, T, 0)
        q0 = list(lq.q)
        stage(lq, ch, T, 0, True, 7)
        assert lq.q == [(x if x[0] == "w" else ("x", 1, x[2])) for x in q0], (lq.q, q0)
        stage(lq, ch, T, 1, True, 5)
        assert lq.q == q0
        a("s_mov_b32", "s65", 6)
        a.label(f"L_k1_loop{ch}")
        stage(lq, ch, T, 0, True, 5)
        stage(lq, ch, T, 1, True, 5)
        assert lq.q == q0
        a("s_sub_u32", "s65", "s65", 1)
        a("s_cmp_lg_u32", "s65", 0)
        a("s_cbranch_scc1", f"L_k1_loop{ch}")
        stage(lq, ch, T, 0, True, 5)
        stage(lq, ch, T, 1, False, 5)
        stage(lq, ch, T, 0, False, 0)
        stage(lq, ch, T, 1, False, 0)
        a("s_waitcnt", mods="lgkmcnt(0)")
        a.text(f"""
        s_lshl_b32 s72, s20, 4
        s_lshl_b32 s73, s23, 2
        s_add_u32 s72, s72, s73
        v_lshlrev_b32 v2, 4, v1
        v_lshlrev_b32 v3, 3, v1
        """)
        if ch == 0:
            a.text(f"""
            s_lshl_b32 s73, s72, 5
            s_add_u32 s73, s73, s21
            s_lshl_b32 s73, s73, 9
            s_add_u32 s73, s73, {PQ_OFF}
            """)
            for b in range(4):
                r = acc(10, b)
                emit_phi_pair(a, 16 + 2 * b, r, r + 1, 11, 12, 13, 84, 85)
                emit_phi_pair(a, 17 + 2 * b, r + 2, r + 3, 11, 12, 13, 84, 85)
                a("buffer_store_dwordx2", vr(16 + 2 * b, 2), "v3", "s[44:47]", "s73", mods="offen")
                a("s_add_u32", "s73", "s73", 32 * 512)
            a("s_barrier")
        else:
            a.text(f"""
            v_and_b32 v4, 3, v1
            v_cmp_eq_u32 s[86:87], 2, v4
            v_mov_b32 v5, 0x3f803f80
            """)
            for b in range(4):
                r = acc(8, b)
                emit_phi_pair(a, 16 + 2 * b, r, r + 1, 11, 12, 13, 84, 85)
                emit_phi_pair(a, 17 + 2 * b, r + 2, r + 3, 11, 12, 13, 84, 85)
                r = acc(9, b)
                a("v_cvt_pk_bf16_f32", vr(24 + 2 * b), vr(r), vr(r + 1))
                a("v_cvt_pk_bf16_f32", vr(25 + 2 * b), vr(r + 2), vr(r + 3))
                r = acc(10, b)
                a("v_cvt_pk_bf16_f32", vr(40 + 2 * b), vr(r), vr(r + 1))
                a("v_cvt_pk_bf16_f32", vr(41 + 2 * b), vr(r + 2), vr(r + 3))
                a("v_cndmask_b32", vr(40 + 2 * b), vr(40 + 2 * b), "v5", "s[86:87]")
                a("v_cndmask_b32", vr(41 + 2 * b), vr(41 + 2 * b), "v5", "s[86:87]")
                emit_phi_pair(a, 32 + 2 * b, r, r + 1, 11, 12, 13, 84, 85)
                emit_phi_pair(a, 33 + 2 * b, r + 2, r + 3, 11, 12, 13, 84, 85)
            for kk in range(2):
                A0 = vr(16 + 4 * kk, 4); B0 = vr(24 + 4 * kk, 4); A1 = vr(32 + 4 * kk, 4); B1 = vr(40 + 4 * kk, 4)
                for (d, A_, B_) in ((48, A0, B0), (52, A0, B1), (56, A1, B0), (60, A1, B1)):
                    a("v_mfma_f32_16x16x32_bf16", vr(d, 4), A_, B_, 0 if kk == 0 else vr(d, 4))
            a.text(f"""
            s_lshl_b32 s73, s21, 11
            s_lshl_b32 s74, s72, 4
            s_add_u32 s73, s73, s74
            s_lshl_b32 s73, s73, 2
            s_add_u32 s73, s73, {PQR_OFF}
            v_lshrrev_b32 v4, 4, v1
            v_lshlrev_b32 v4, 4, v4
            s_mov_b32 s74, 0x05040100
            s_mov_b32 s75, 0x07060302
            s_mov_b32 s76, 0x01000100
            s_mov_b32 s77, 0x01000100
            """)
            for b in range(4):
                a("v_mov_b32_dpp", "v11", vr(32 + 2 * b), mods="quad_perm:[1,0,3,2] row_mask:0xf bank_mask:0xf")
                a("v_mov_b32_dpp", "v12", vr(33 + 2 * b), mods="quad_perm:[1,0,3,2] row_mask:0xf bank_mask:0xf")
                a("v_perm_b32", "v64", "v11", vr(32 + 2 * b), "s74")
                a("v_perm_b32", "v65", "v11", vr(32 + 2 * b), "s75")
                a("v_perm_b32", "v66", "v12", vr(33 + 2 * b), "s74")
                a("v_perm_b32", "v67", "v12", vr(33 + 2 * b), "s75")
                a("s_mov_b64", "exec", "s[76:77]")
                a("buffer_store_dwordx4", "v[64:67]", "v4", "s[44:47]", "s73", mods=f"offen offset:{b*64}")
                a("s_mov_b64", "exec", -1)
            KVL = 2 * K1_STAGE
            a.text(f"""
            s_lshl_b32 s73, s23, 12
            s_add_u32 s73, s73, {KVL}
            v_add_u32 v4, s73, v2
            ds_write_b128 v4, v[48:51]
            ds_write_b128 v4, v[52:55] offset:1024
            ds_write_b128 v4, v[56:59] offset:2048
            ds_write_b128 v4, v[60:63] offset:3072
            s_waitcnt lgkmcnt(0)
            s_barrier
            s_cmp_lg_u32 s23, 0
            s_cbranch_scc1 L_k1_nokv
            """)
            for w in range(1, 4):
                for tl in range(4):
                    a("ds_read_b128", vr(16 + tl * 4, 4), "v4", mods=f"offset:{w*4096+tl*1024}")
                a("s_waitcnt", mods="lgkmcnt(0)")
                for r in range(16): a("v_add_f32", vr(48 + r), vr(48 + r), vr(16 + r))
            a.text(f"""
            s_lshl_b32 s73, s21, 3
            s_add_u32 s73, s73, s20
            s_lshl_b32 s73, s73, 12
            s_add_u32 s73, s73, {KVP_OFF}
            buffer_store_dwordx4 v[48:51], v2, s[44:47], s73 offen sc1
            buffer_store_dwordx4 v[52:55], v2, s[44:47], s73 offen offset:1024 sc1
            buffer_store_dwordx4 v[56:59], v2, s[44:47], s73 offen offset:2048 sc1
            buffer_store_dwordx4 v[60:63], v2, s[44:47], s73 offen offset:3072 sc1
            s_waitcnt vmcnt(0)
            """)
            srd(a, 48, "s16", "s17", 256)
            a.text(f"""
            s_lshl_b32 s73, s21, 2
            v_mov_b32 v11, 1
            v_mov_b32 v12, 0
            s_mov_b64 exec, 1
            buffer_atomic_add v11, v12, s[48:51], s73 offen sc0
            s_mov_b64 exec, -1
            s_waitcnt vmcnt(0)
            v_readfirstlane_b32 s73, v11
            s_cmp_lg_u32 s73, 7
            s_cbranch_scc1 L_k1_nokv
            s_lshl_b32 s73, s21, 15
            s_add_u32 s73, s73, {KVP_OFF}
            """)
            for i in range(8):
                for tl in range(4):
                    a("buffer_load_dwordx4", vr(16 + tl * 4, 4), "v2", "s[44:47]", "s73", mods=f"offen offset:{tl*1024} sc1")
                a("s_add_u32", "s73", "s73", 4096)
                a("s_waitcnt", mods="vmcnt(0)")
                for r in range(16):
                    if i == 0: a("v_mov_b32", vr(48 + r), vr(16 + r))
                    else: a("v_add_f32", vr(48 + r), vr(48 + r), vr(16 + r))
            a.text(f"""
            v_cmp_gt_u32 vcc, 16, v1
            v_cvt_pk_bf16_f32 v16, v48, v49
            v_cvt_pk_bf16_f32 v17, v50, v51
            v_cvt_pk_bf16_f32 v18, v56, v57
            v_cndmask_b32 v18, 0, v18, vcc
            v_mov_b32 v19, 0
            v_cvt_pk_bf16_f32 v20, v52, v53
            v_cvt_pk_bf16_f32 v21, v54, v55
            v_cvt_pk_bf16_f32 v22, v60, v61
            v_cndmask_b32 v22, 0, v22, vcc
            v_mov_b32 v23, 0
            s_lshl_b32 s73, s21, 11
            s_add_u32 s73, s73, {KVX_OFF}
            buffer_store_dwordx4 v[16:19], v2, s[44:47], s73 offen
            buffer_store_dwordx4 v[20:23], v2, s[44:47], s73 offen offset:1024
            """)
            a.label("L_k1_nokv")
        C0 = -2.0 * 0.7978845608028654 * LOG2E
        C1 = C0 * 0.044715
        a.text(f"""
        s_mul_i32 s73, s21, 9
        s_add_u32 s74, s73, s68
        s_lshr_b32 s74, s74, 1
        s_mul_i32 s75, s72, 144
        s_add_u32 s74, s74, s75
        s_lshl_b32 s74, s74, 10
        s_add_u32 s76, s73, s69
        s_and_b32 s77, s76, 1
        s_lshr_b32 s76, s76, 1
        s_add_u32 s76, s76, s75
        s_lshl_b32 s76, s76, 10
        s_lshl_b32 s77, s77, 3
        s_add_u32 s76, s76, s77
        s_mov_b32 s78, {f32bits(C1)}
        s_mov_b32 s79, {f32bits(C1)}
        v_mov_b32 v4, {f32bits(C0)}
        v_mov_b32 v5, {f32bits(C0)}
        """)
        def gelu_pair(dst, g, u, t):
            a("v_pk_mul_f32", vr(t, 2), vr(g, 2), vr(g, 2))
            a("v_pk_fma_f32", vr(t, 2), vr(t, 2), "s[78:79]", "v[4:5]")
            a("v_pk_mul_f32", vr(t, 2), vr(t, 2), vr(g, 2))
            a("v_exp_f32", vr(t), vr(t))
            a("v_exp_f32", vr(t + 1), vr(t + 1))
            a("v_pk_mul_f32", vr(t + 2, 2), vr(g, 2), vr(u, 2))
            a("v_pk_add_f32", vr(t, 2), vr(t, 2), "1.0", mods="op_sel_hi:[1,0]")
            a("v_rcp_f32", vr(t), vr(t))
            a("v_rcp_f32", vr(t + 1), vr(t + 1))
            a("v_pk_mul_f32", vr(t + 2, 2), vr(t + 2, 2), vr(t, 2))
            a("v_cvt_pk_bf16_f32", vr(dst), vr(t + 2), vr(t + 3))
        tmp = 0
        for b in range(4):
            for p in range(2):
                o = 16 + (tmp % 4) * 4; tmp += 1
                for h in range(2):
                    tl = 2 * p + h
                    gelu_pair(o + 2 * h, acc(tl, b), acc(tl + 4, b), 32)
                    gelu_pair(o + 2 * h + 1, acc(tl, b) + 2, acc(tl + 4, b) + 2, 36)
                a("buffer_store_dwordx4", vr(o, 4), "v2", "s[44:47]", "s74", mods=f"offen offset:{p*1024}")
            if ch == 0:
                o = 40 + (b % 2) * 2
                gelu_pair(o, acc(8, b), acc(9, b), 32)
                gelu_pair(o + 1, acc(8, b) + 2, acc(9, b) + 2, 36)
                a("buffer_store_dwordx2", vr(o, 2), "v2", "s[44:47]", "s76", mods="offen")
                a("s_add_u32", "s76", "s76", 147456)
            a("s_add_u32", "s74", "s74", 147456)
        a("s_endpgm")
    a.label("L_k1_end")
    a("s_endpgm")
    return N, a, 256


class VQ:
    def __init__(self, a): self.a = a; self.q = []
    def issue(self, tag): self.q.append(tag); assert len(self.q) <= 63, len(self.q)
    def wait(self, *tags):
        idx = -1
        for i, t in enumerate(self.q):
            if t in tags: idx = i
        if idx < 0: return
        n = len(self.q) - 1 - idx
        self.a("s_waitcnt", mods=f"vmcnt({n})")
        self.q = self.q[idx + 1:]

def gen_k2():
    a = Asm()
    N = "k2_kernel"
    PD = 6; NS = 7; NB = 7
    ACC = 128
    def acc(b, nt): return ACC + (b * 9 + nt) * 4
    HB = lambda t, b: 64 + (t % NB) * 8 + b * 4
    WF = lambda s: 16 + s * 4
    a.text(f"""
    s_cmp_ge_u32 s2, 256
    s_cbranch_scc1 L_k2_end
    s_load_dwordx2 s[4:5], s[0:1], 48
    s_load_dwordx2 s[18:19], s[0:1], 80
    v_and_b32 v1, 63, v0
    v_lshrrev_b32 v11, 6, v0
    v_readfirstlane_b32 s22, v11
    s_and_b32 s20, s2, 7
    s_lshr_b32 s26, s2, 3
    s_and_b32 s21, s26, 3
    s_lshr_b32 s23, s26, 2
    s_waitcnt lgkmcnt(0)
    """)
    srd(a, 28, "s4", "s5", 5308416)
    srd(a, 44, "s18", "s19", WS_SIZE)
    a.text(f"""
    s_lshl_b32 s24, s23, 4
    s_lshl_b32 s25, s22, 1
    s_add_u32 s24, s24, s25
    v_cmp_lt_u32 vcc, 17, v1
    v_subrev_u32 v11, 18, v1
    v_cndmask_b32 v11, v1, v11, vcc
    v_cndmask_b32 v12, 0, 1, vcc
    s_lshl_b32 s25, s22, 2
    v_add_u32 v12, s25, v12
    v_mul_u32_u24 v12, 1152, v12
    v_lshl_add_u32 v2, v11, 4, v12
    s_mul_i32 s25, s21, 288
    v_add_u32 v2, s25, v2
    v_add_u32 v3, 2304, v2
    s_mul_i32 s52, s20, {576*1152}
    s_mul_i32 s59, s22, 1152
    v_lshlrev_b32 v4, 4, v1
    v_add_u32 v5, 147456, v4
    s_mul_i32 s53, s24, 144
    s_mul_i32 s25, s20, 18
    s_add_u32 s53, s53, s25
    s_lshl_b32 s53, s53, 10
    v_lshrrev_b32 v11, 4, v1
    v_bfe_u32 v12, v1, 2, 2
    v_lshl_add_u32 v11, v11, 2, v12
    v_mul_u32_u24 v11, 288, v11
    v_and_b32 v12, 3, v1
    v_lshl_add_u32 v7, v12, 3, v11
    s_mov_b32 s60, -1
    s_mov_b32 s61, 0xf
    v_and_b32 v11, 15, v1
    v_lshlrev_b32 v11, 2, v11
    s_lshl_b32 s25, s24, 6
    s_add_u32 s25, s25, {G_OFF + 8192}
    buffer_load_dword v8, v11, s[44:47], s25 offen
    buffer_load_dword v9, v11, s[44:47], s25 offen offset:64
    """)
    vq = VQ(a); lq = LQ(a)
    vq.issue("g"); vq.issue("g")
    def loads(t, part):
        if part == 0:
            a("s_add_u32", "m0", "s59", (t % NS) * 9216)
            a("s_mov_b64", "exec", "s[60:61]")
            a("buffer_load_dwordx4", "v2", "s[28:31]", "s52", mods="offen lds"); vq.issue(("d", t))
            a("s_add_u32", "m0", "s59", (t % NS) * 9216 + 576)
            a("buffer_load_dwordx4", "v3", "s[28:31]", "s52", mods="offen lds"); vq.issue(("d", t))
            a("s_mov_b64", "exec", -1)
            a("s_add_u32", "s52", "s52", 32 * 1152)
        else:
            a("buffer_load_dwordx4", vr(HB(t, 0), 4), "v4", "s[44:47]", "s53", mods="offen"); vq.issue(("h", t))
            a("buffer_load_dwordx4", vr(HB(t, 1), 4), "v5", "s[44:47]", "s53", mods="offen"); vq.issue(("h", t))
            a("s_add_u32", "s53", "s53", 1024)
    for t in range(PD):
        loads(t, 0); loads(t, 1)
    for r in range(ACC, ACC + 72): a("v_mov_b32", vr(r), 0)
    NT = 18 * 9
    def read_tile(gi):
        t, nt = divmod(gi, 9)
        sl = gi % 4
        base = (t % NS) * 9216 + nt * 32
        a("ds_read_b64_tr_b16", vr(WF(sl), 2), "v7", mods=f"offset:{base}"); lq.issue(("w", gi))
        a("ds_read_b64_tr_b16", vr(WF(sl) + 2, 2), "v7", mods=f"offset:{base+4608}"); lq.issue(("w", gi))
    vq.wait(("d", 0))
    a("s_barrier")
    for gi in range(3): read_tile(gi)
    for t in range(18):
        if t + 1 < 18:
            vq.wait(("d", t + 1), ("h", t))
            a("s_barrier")
        else:
            vq.wait(("h", t))
        for nt in range(9):
            gi = t * 9 + nt
            if gi + 3 < NT: read_tile(gi + 3)
            lq.wait(("w", gi))
            for b in range(2):
                a("v_mfma_f32_16x16x32_bf16", vr(acc(b, nt), 4), vr(WF(gi % 4), 4), vr(HB(t, b), 4), vr(acc(b, nt), 4))
            if t + PD < 18:
                if nt == 1: loads(t + PD, 0)
                if nt == 4: loads(t + PD, 1)
    vq.wait("g")
    a.text(f"""
    s_lshl_b32 s25, s20, 7
    s_add_u32 s25, s25, s24
    s_mul_i32 s25, s25, 36
    s_mul_i32 s26, s21, 9
    s_add_u32 s25, s25, s26
    s_lshl_b32 s25, s25, 10
    s_add_u32 s25, s25, {P_OFF}
    """)
    for b in range(2):
        for nt in range(9):
            r = acc(b, nt)
            for k in range(4): a("v_mul_f32", vr(r + k), vr(8 + b), vr(r + k))
            a("buffer_store_dwordx4", vr(r, 4), "v4", "s[44:47]", "s25", mods=f"offen offset:{(nt%3)*1024}")
            if nt % 3 == 2: a("s_add_u32", "s25", "s25", 3072 if nt < 8 else 3072 + 27 * 1024)
    a.label("L_k2_end")
    a("s_endpgm")
    return N, a, 200

def gen_k3():
    a = Asm()
    N = "k3_kernel"
    ACC = 184
    def acc(b, nt): return ACC + (b * 9 + nt) * 4
    TP = 112
    KVX = lambda hh, tl: 48 + (hh % 4) * 8 + tl * 4
    PQF = lambda hh, b: 80 + (hh % 4) * 8 + b * 4
    WF = lambda s: 16 + s * 4
    OF = lambda b: 32 + b * 4
    D0 = 40; D1 = 44
    a.text(f"""
    s_cmp_ge_u32 s2, 256
    s_cbranch_scc1 L_k3_end
    s_load_dwordx2 s[4:5], s[0:1], 16
    s_load_dwordx2 s[6:7], s[0:1], 64
    s_load_dwordx2 s[18:19], s[0:1], 80
    v_and_b32 v1, 63, v0
    v_lshrrev_b32 v11, 6, v0
    v_readfirstlane_b32 s22, v11
    s_and_b32 s21, s2, 3
    s_lshr_b32 s23, s2, 2
    s_lshl_b32 s24, s23, 1
    s_waitcnt lgkmcnt(0)
    """)
    srd(a, 28, "s4", "s5", 663552)
    srd(a, 32, "s6", "s7", 2359296)
    srd(a, 44, "s18", "s19", WS_SIZE)
    vq = VQ(a); lq = LQ(a)
    a("s_mul_i32", "s25", "s21", 288)
    for k in range(6):
        a.text(f"""
        v_add_u32 v11, {64*k}, v1
        v_mul_u32_u24 v12, 3641, v11
        v_lshrrev_b32 v12, 16, v12
        v_mul_u32_u24 v13, 18, v12
        v_sub_u32 v13, v11, v13
        v_mul_u32_u24 v12, 1152, v12
        v_lshl_add_u32 v12, v13, 4, v12
        v_add_u32 v{2+k}, s25, v12
        """)
    a.text(f"""
    v_lshlrev_b32 v8, 4, v1
    v_lshlrev_b32 v9, 3, v1
    v_and_b32 v11, 15, v1
    v_lshlrev_b32 v12, 2, v11
    v_cmp_gt_u32 vcc, 16, v1
    v_mov_b32 v13, 0x10000000
    v_cndmask_b32 v10, v13, v12, vcc
    s_lshl_b32 s25, s24, 6
    s_add_u32 s25, s25, {G_OFF}
    buffer_load_dword v14, v12, s[44:47], s25 offen
    buffer_load_dword v15, v12, s[44:47], s25 offen offset:64
    s_mul_i32 s52, s22, {144*1152}
    s_mul_i32 s59, s22, 24576
    s_lshl_b32 s53, s22, 14
    s_add_u32 s53, s53, {KVX_OFF}
    s_lshl_b32 s54, s24, 5
    s_lshl_b32 s25, s22, 3
    s_add_u32 s54, s54, s25
    s_lshl_b32 s54, s54, 9
    s_add_u32 s54, s54, {PQ_OFF}
    s_add_u32 s56, s54, {32*512}
    s_lshl_b32 s55, s22, 14
    s_lshl_b32 s25, s24, 4
    s_add_u32 s55, s55, s25
    s_lshl_b32 s55, s55, 2
    s_add_u32 s55, s55, {PQR_OFF}
    v_lshrrev_b32 v11, 4, v1
    v_bfe_u32 v12, v1, 2, 2
    v_lshl_add_u32 v11, v11, 2, v12
    v_mul_u32_u24 v11, 288, v11
    v_and_b32 v13, 3, v1
    v_lshl_add_u32 v11, v13, 3, v11
    v_add_u32 v11, s59, v11
    v_add_u32 v12, 16, v12
    v_mul_u32_u24 v12, 288, v12
    v_lshl_add_u32 v12, v13, 3, v12
    v_add_u32 v12, s59, v12
    v_lshrrev_b32 v13, 4, v1
    v_cmp_eq_u32 s[62:63], 1, v13
    """)
    vq.issue("g"); vq.issue("g")
    for hh in range(4):
        for b in range(2): a("v_mov_b32", vr(PQF(hh, b) + 3), 0)
    a("v_mov_b32", vr(OF(0) + 3), 0)
    a("v_mov_b32", vr(OF(1) + 3), 0)
    def head_loads(hh):
        a("buffer_load_dwordx4", vr(KVX(hh, 0), 4), "v8", "s[44:47]", "s53", mods="offen"); vq.issue(("k", hh))
        a("buffer_load_dwordx4", vr(KVX(hh, 1), 4), "v8", "s[44:47]", "s53", mods="offen offset:1024"); vq.issue(("k", hh))
        a("s_add_u32", "s53", "s53", 2048)
        a("buffer_load_dwordx2", vr(PQF(hh, 0), 2), "v9", "s[44:47]", "s54", mods="offen"); vq.issue(("k", hh))
        a("buffer_load_dwordx2", vr(PQF(hh, 1), 2), "v9", "s[44:47]", "s56", mods="offen"); vq.issue(("k", hh))
        a("s_add_u32", "s54", "s54", 512)
        a("s_add_u32", "s56", "s56", 512)
        a("buffer_load_dword", vr(PQF(hh, 0) + 2), "v10", "s[44:47]", "s55", mods="offen"); vq.issue(("k", hh))
        a("buffer_load_dword", vr(PQF(hh, 1) + 2), "v10", "s[44:47]", "s55", mods="offen offset:64"); vq.issue(("k", hh))
        a("s_add_u32", "s55", "s55", 8192)
        for k in range(6):
            a("s_add_u32", "m0", "s59", (hh % 4) * 6144 + k * 1024)
            a("buffer_load_dwordx4", vr(2 + k), "s[28:31]", "s52", mods="offen lds"); vq.issue(("d", hh))
        a("s_add_u32", "s52", "s52", 18 * 1152)
    for hh in range(4): head_loads(hh)
    a.text(f"""
    s_lshl_b32 s57, s22, 8
    s_add_u32 s57, s57, s24
    s_mul_i32 s57, s57, 36
    s_mul_i32 s25, s21, 9
    s_add_u32 s57, s57, s25
    s_lshl_b32 s57, s57, 10
    s_add_u32 s57, s57, {P_OFF}
    """)
    def partial_loads(k):
        which = k // 3
        for tl in range((k % 3) * 6, (k % 3) * 6 + 6):
            b, nt = divmod(tl, 9)
            off = which * 128 * 36 * 1024 + b * 36 * 1024 + nt * 1024
            a("s_add_u32", "s58", "s57", off & ~4095)
            a("buffer_load_dwordx4", vr(TP + tl * 4, 4), "v8", "s[44:47]", "s58", mods=f"offen offset:{off & 4095}"); vq.issue(("p", k))
    def partial_add(k):
        vq.wait(("p", k))
        for r in range((k % 3) * 24, (k % 3) * 24 + 24): a("v_add_f32", vr(ACC + r), vr(ACC + r), vr(TP + r))
    for r in range(ACC, ACC + 72): a("v_mov_b32", vr(r), 0)
    a("s_mov_b32", "s64", f32bits(1e-6))
    for hh in range(8):
        vq.wait(("k", hh), "g")
        for b in range(2):
            a("v_mfma_f32_16x16x32_bf16", vr(D0, 4), vr(KVX(hh, 0), 4), vr(PQF(hh, b), 4), 0)
            a("v_mfma_f32_16x16x32_bf16", vr(D1, 4), vr(KVX(hh, 1), 4), vr(PQF(hh, b), 4), 0)
            a("v_add_f32", vr(D1 + 2), "s64", vr(D1 + 2))
            a("v_rcp_f32", vr(D1 + 2), vr(D1 + 2))
            a("v_mul_f32", vr(D1 + 2), vr(14 + b), vr(D1 + 2))
            for k in range(4): a("v_mul_f32", vr(D0 + k), vr(D1 + 2), vr(D0 + k))
            for k in range(2): a("v_mul_f32", vr(D1 + k), vr(D1 + 2), vr(D1 + k))
            a("v_cvt_pk_bf16_f32", vr(OF(b)), vr(D0), vr(D0 + 1))
            a("v_cvt_pk_bf16_f32", vr(OF(b) + 1), vr(D0 + 2), vr(D0 + 3))
            a("v_cvt_pk_bf16_f32", vr(OF(b) + 2), vr(D1), vr(D1 + 1))
            a("v_cndmask_b32", vr(OF(b) + 2), 0, vr(OF(b) + 2), "s[62:63]")
        vq.wait(("d", hh))
        def rd(nt):
            base = (hh % 4) * 6144 + nt * 32
            a("ds_read_b64_tr_b16", vr(WF(nt % 4), 2), "v11", mods=f"offset:{base}"); lq.issue(("w", nt))
            a("ds_read_b64_tr_b16", vr(WF(nt % 4) + 2, 2), "v12", mods=f"offset:{base}"); lq.issue(("w", nt))
        for nt in range(3): rd(nt)
        for nt in range(9):
            if nt + 3 < 9: rd(nt + 3)
            lq.wait(("w", nt))
            for b in range(2):
                a("v_mfma_f32_16x16x32_bf16", vr(acc(b, nt), 4), vr(WF(nt % 4), 4), vr(OF(b), 4), vr(acc(b, nt), 4))
        if hh + 4 < 8: head_loads(hh + 4)
        if hh >= 2: partial_add(hh - 2)
        if hh <= 5: partial_loads(hh)
    a("s_barrier")
    a.text(f"""
    s_mul_i32 s25, s22, 18432
    v_add_u32 v11, s25, v8
    """)
    for tl in range(18):
        a("ds_write_b128", "v11", vr(ACC + tl * 4, 4), mods=f"offset:{tl*1024}")
    a.text(f"""
    s_waitcnt lgkmcnt(0)
    s_barrier
    s_lshl_b32 s25, s22, 10
    v_add_u32 v11, s25, v8
    v_and_b32 v12, 15, v1
    v_mul_u32_u24 v12, 1152, v12
    v_lshrrev_b32 v13, 4, v1
    v_lshl_add_u32 v12, v13, 3, v12
    v_add_u32 v14, 36864, v11
    """)
    for k in range(5):
        if k == 4:
            a("s_cmp_ge_u32", "s22", 2)
            a("s_cbranch_scc1", "L_k3_end")
        for w in range(4):
            a("ds_read_b128", vr(16 + w * 4, 4), "v11" if w < 2 else "v14", mods=f"offset:{(w%2)*18432 + k*4096}")
        a.text(f"""
        s_add_u32 s25, s22, {4*k}
        s_cmp_ge_u32 s25, 9
        s_cselect_b32 s26, 1, 0
        s_cselect_b32 s27, 9, 0
        s_sub_u32 s25, s25, s27
        s_add_u32 s26, s26, s24
        s_mul_i32 s26, s26, {16*1152}
        s_mul_i32 s27, s21, 288
        s_add_u32 s26, s26, s27
        s_lshl_b32 s25, s25, 5
        s_add_u32 s26, s26, s25
        s_waitcnt lgkmcnt(0)
        """)
        for r in range(4):
            a("v_add_f32", vr(16 + r), vr(16 + r), vr(20 + r))
            a("v_add_f32", vr(24 + r), vr(24 + r), vr(28 + r))
            a("v_add_f32", vr(16 + r), vr(16 + r), vr(24 + r))
        a("v_cvt_pk_bf16_f32", vr(32 + 2 * k), "v16", "v17")
        a("v_cvt_pk_bf16_f32", vr(33 + 2 * k), "v18", "v19")
        a("buffer_store_dwordx2", vr(32 + 2 * k, 2), "v12", "s[32:35]", "s26", mods="offen")
    a.label("L_k3_end")
    a("s_endpgm")
    return N, a, 256

HEADER = open("gated_mix__linear_attn_block__geglu_ffn__prompt.s.ref").read().split("; Override")[0]

def build(path):
    ks = [gen_k1(), gen_k2(), gen_k3()]
    launches = [("k1_kernel", 256, 512, 4 * K1_STAGE), ("k2_kernel", 256, 512, 7 * 9216 + 20480), ("k3_kernel", 256, 256, 98304)]
    out = HEADER
    for (n, g, b, l) in launches:
        out += f"; @launch kernel={n} grid=({g},1,1) block=({b},1,1) lds={l}\n"
    out += '.amdgcn_target "amdgcn-amd-amdhsa--gfx950"\n.text\n'
    for n, a, v in ks:
        out += f".globl {n}\n.p2align 8\n.type {n},@function\n{n}:\n" + a.render() + "\n"
    out += '.section .rodata,"a"\n'
    for n, a, v in ks:
        out += kdesc(n, v) + "\n"
    open(path, "w").write(out)

if __name__ == "__main__":
    build(sys.argv[1] if len(sys.argv) > 1 else "gated_mix__linear_attn_block__geglu_ffn__prompt.s")
```
